```python
import torch

def _softmax(x, axis=-1):
    return torch.softmax(x, dim=axis)
def _gelu(x):
    return torch.nn.functional.gelu(x, approximate="tanh")
def _silu(x):
    return torch.nn.functional.silu(x)
def _sigmoid(x):
    return torch.sigmoid(x)
def _layernorm(x, axis=-1, eps=1e-5):
    m = x.mean(dim=axis, keepdim=True)
    v = x.var(dim=axis, keepdim=True, unbiased=False)
    return (x - m) / torch.sqrt(v + eps)
def _scatter_add(tgt, idx, src, axis=0):
    return tgt.clone().index_add_(axis, idx, src)
def _segment_sum(src, seg, n):
    out = torch.zeros((n,) + src.shape[1:], dtype=src.dtype)
    return out.index_add_(0, seg, src)
def _pad(x, pw):
    flat = tuple(v for pair in reversed(pw) for v in pair)
    return torch.nn.functional.pad(x, flat)

kernel_name = 'concat_heads__mha_block_cached__gqa_block_cached__near_ridge'

def setup_inputs():

    _w = (lambda a: (lambda t: t.to(torch.bfloat16) if t.is_floating_point() else t)(torch.as_tensor(a)))
    def _A_setup():
        B, Sq, D = 8, 192, 640
        H, Sk, Dh = 32, 512, 128
        return {
            "x": _w((lambda *s: torch.randn(*s, dtype=torch.bfloat16) * 0.8)(B, Sq, D)),
            "k_cache": _w((lambda *s: torch.randn(*s, dtype=torch.bfloat16) * 0.8)(B, H, Sk, Dh)),
            "v_cache": _w((lambda *s: torch.randn(*s, dtype=torch.bfloat16) * 0.05)(B, H, Sk, Dh)),
            "wq": _w((lambda *s: torch.randn(*s, dtype=torch.bfloat16) * 0.8)(D, H * Dh) * (D ** -0.5)),
            "wo": _w((lambda *s: torch.randn(*s, dtype=torch.bfloat16) * 0.05)(H * Dh, D) * ((H * Dh) ** -0.5)),
        }
    _A_in = _A_setup()

    def _B_setup():
        B, Sq, D = 8, 192, 640
        Hq, Hkv, Sk, Dh = 32, 32, 512, 128
        assert Hq % Hkv == 0, (Hq, Hkv)
        return {
            "x": _w((lambda *s: torch.randn(*s, dtype=torch.bfloat16) * 0.8)(B, Sq, D)),
            "k_cache": _w((lambda *s: torch.randn(*s, dtype=torch.bfloat16) * 0.8)(B, Hkv, Sk, Dh)),
            "v_cache": _w((lambda *s: torch.randn(*s, dtype=torch.bfloat16) * 0.05)(B, Hkv, Sk, Dh)),
            "wq": _w((lambda *s: torch.randn(*s, dtype=torch.bfloat16) * 0.8)(D, Hq * Dh) * (D ** -0.5)),
            "wo": _w((lambda *s: torch.randn(*s, dtype=torch.bfloat16) * 0.05)(Hq * Dh, D) * ((Hq * Dh) ** -0.5)),
        }
    _B_in = _B_setup()

    return {
        "A_x": _A_in["x"],
        "A_k_cache": _A_in["k_cache"],
        "A_v_cache": _A_in["v_cache"],
        "A_wq": _A_in["wq"],
        "A_wo": _A_in["wo"],
        "B_x": _B_in["x"],
        "B_k_cache": _B_in["k_cache"],
        "B_v_cache": _B_in["v_cache"],
        "B_wq": _B_in["wq"],
        "B_wo": _B_in["wo"],
    }

def reference(A_x, A_k_cache, A_v_cache, A_wq, A_wo, B_x, B_k_cache, B_v_cache, B_wq, B_wo):
    def _A_ref(x, k_cache, v_cache, wq, wo):
        B, Sq, D = x.shape
        H, Dh = 32, 128
        q = (lambda x, *d: x.permute(*d))((x @ wq).reshape(B, Sq, H, Dh), 0, 2, 1, 3)
        scores = torch.einsum("bhqd,bhkd->bhqk", q, k_cache) * (Dh ** -0.5)
        p = _softmax(scores, axis=-1)
        o = torch.einsum("bhqk,bhkd->bhqd", p, v_cache)
        return (lambda x, *d: x.permute(*d))(o, 0, 2, 1, 3).reshape(B, Sq, H * Dh) @ wo

    def _B_ref(x, k_cache, v_cache, wq, wo):
        B, Sq, D = x.shape
        Hq, Dh = 32, 128
        Hkv = k_cache.shape[1]
        rep = Hq // Hkv
        q = (lambda x, *d: x.permute(*d))((x @ wq).reshape(B, Sq, Hq, Dh), 0, 2, 1, 3)
        k = (lambda x, n, axis: torch.repeat_interleave(x, n, dim=axis))(k_cache, rep, axis=1)
        v = (lambda x, n, axis: torch.repeat_interleave(x, n, dim=axis))(v_cache, rep, axis=1)
        scores = torch.einsum("bhqd,bhkd->bhqk", q, k) * (Dh ** -0.5)
        p = _softmax(scores, axis=-1)
        o = torch.einsum("bhqk,bhkd->bhqd", p, v)
        return (lambda x, *d: x.permute(*d))(o, 0, 2, 1, 3).reshape(B, Sq, Hq * Dh) @ wo

    a = _A_ref(A_x, A_k_cache, A_v_cache, A_wq, A_wo)
    b = _B_ref(B_x, B_k_cache, B_v_cache, B_wq, B_wo)
    return torch.concatenate([a, b], axis=-1)
```

```python
import re

REG_RE = re.compile(r'^(-?)(?:abs\()?([vas])(?:(\d+)|\[(\d+):(\d+)\])\)?$')

def parse_reg(tok):
    tok = tok.strip()
    if tok in ('vcc',): return [('s', 106), ('s', 107)]
    if tok == 'vcc_lo': return [('s', 106)]
    if tok == 'vcc_hi': return [('s', 107)]
    if tok == 'exec': return [('s', 126), ('s', 127)]
    if tok == 'm0': return [('s', 124)]
    if tok == 'scc': return []
    m = REG_RE.match(tok)
    if not m: return []
    f = m.group(2)
    if m.group(3) is not None:
        lo = hi = int(m.group(3))
    else:
        lo, hi = int(m.group(4)), int(m.group(5))
    return [(f, i) for i in range(lo, hi + 1)]

def split_ops(s):
    ops, depth, cur = [], 0, ''
    for ch in s:
        if ch in '[(': depth += 1
        elif ch in '])': depth -= 1
        if ch == ',' and depth == 0:
            ops.append(cur.strip()); cur = ''
        else:
            cur += ch
    if cur.strip(): ops.append(cur.strip())
    return ops

TRANS = ('v_exp_f32', 'v_log_f32', 'v_rcp_f32', 'v_rsq_f32', 'v_sqrt_f32', 'v_sin_f32', 'v_cos_f32')

class Ins:
    __slots__ = ('text', 'mn', 'kind', 'wr', 'rd', 'srcC', 'passes', 'states', 'extra')
    def __init__(self, text):
        self.text = text
        t = text.split(';')[0].strip()
        parts = t.split(None, 1)
        self.mn = mn = parts[0]
        rest = parts[1] if len(parts) > 1 else ''
        ops = split_ops(rest)
        toks = []
        for o in ops:
            toks.append(o.split()[0] if o else o)
        self.wr, self.rd, self.srcC, self.passes, self.states, self.extra = [], [], [], 0, 1, {}
        base = re.sub(r'_(e32|e64|dpp|sdwa)$', '', mn)
        R = lambda i: parse_reg(toks[i]) if i < len(toks) else []
        if mn.startswith('v_mfma'):
            self.kind = 'mfma'
            self.wr = R(0); self.rd = R(1) + R(2) + R(3); self.srcC = R(3)
            self.extra['A'] = R(1); self.extra['B'] = R(2)
            self.passes = 4 if '16x16x32' in mn else (8 if '32x32x16' in mn else 16)
        elif mn.startswith('v_cmp'):
            self.kind = 'valu'
            self.wr = R(0); self.rd = R(1) + R(2)
            if mn.startswith('v_cmpx'): self.wr += parse_reg('exec')
        elif base in ('v_readfirstlane_b32', 'v_readlane_b32'):
            self.kind = 'valu'; self.wr = R(0); self.rd = R(1) + R(2); self.extra['readlane'] = True
        elif base.startswith('v_permlane') and 'swap' in base:
            self.kind = 'valu'; self.wr = R(0) + R(1); self.rd = R(0) + R(1); self.extra['permlane'] = True
        elif mn.startswith('v_'):
            self.kind = 'valu'
            self.wr = R(0)
            self.rd = []
            k0 = 1
            if base in ('v_add_co_u32', 'v_sub_co_u32', 'v_addc_co_u32', 'v_subb_co_u32', 'v_subrev_co_u32'):
                self.wr += R(1); k0 = 2
            for i in range(k0, len(toks)): self.rd += R(i)
            if base in ('v_fmac_f32', 'v_pk_fmac_f16', 'v_fmaak_f32', 'v_writelane_b32'): self.rd += R(0)
            if base == 'v_cndmask_b32' and len(toks) == 3: self.rd += parse_reg('vcc')
            if base in TRANS: self.extra['trans'] = True
            if 'dpp' in mn or 'row_' in rest or 'quad_perm' in rest: self.extra['dpp'] = True
        elif mn.startswith('ds_'):
            self.kind = 'ds'
            if mn.startswith('ds_read') or mn.startswith('ds_bpermute') or mn.startswith('ds_permute') or mn.startswith('ds_swizzle'):
                self.wr = R(0)
                for i in range(1, len(toks)): self.rd += R(i)
            elif 'rtn' in mn:
                self.wr = R(0)
                for i in range(1, len(toks)): self.rd += R(i)
            else:
                for i in range(len(toks)): self.rd += R(i)
        elif mn.startswith('buffer_') or mn.startswith('global_'):
            self.kind = 'vmem'
            islds = (' lds' in ' ' + rest) or 'load_lds' in mn
            if mn in ('buffer_wbl2', 'buffer_inv'):
                pass
            elif 'load' in mn and not islds:
                self.wr = R(0)
                for i in range(1, len(toks)): self.rd += R(i)
            elif 'atomic' in mn and ' sc0' in ' ' + rest:
                self.wr = R(0)
                for i in range(1, len(toks)): self.rd += R(i)
            else:
                for i in range(len(toks)): self.rd += R(i)
            if islds: self.extra['lds'] = True; self.rd += parse_reg('m0')
            if 'store' in mn and ('x4' in mn or 'x3' in mn):
                self.extra['widestore'] = R(0) if mn.startswith('buffer') else R(1)
        elif mn.startswith('s_'):
            self.kind = 'salu'
            if mn == 's_nop':
                self.states = int(toks[0], 0) + 1
            elif mn.startswith('s_cmp') or mn.startswith('s_cbranch') or mn in ('s_branch', 's_barrier', 's_waitcnt', 's_endpgm', 's_setprio', 's_sleep', 's_bitcmp1_b32', 's_bitcmp0_b32'):
                for i in range(len(toks)): self.rd += R(i)
            else:
                self.wr = R(0)
                for i in range(1, len(toks)): self.rd += R(i)
                if mn in ('s_and_saveexec_b64', 's_or_saveexec_b64'): self.wr += parse_reg('exec')
        else:
            raise ValueError('unknown instr ' + text)

def need_states(p, c):
    n = 0
    pw = set(p.wr); cr = set(c.rd); cw = set(c.wr)
    pv = {r for r in pw if r[0] in 'va'}
    ps = {r for r in pw if r[0] == 's'}
    if p.kind == 'valu':
        if c.kind == 'mfma' and pv & cr: n = max(n, 2)
        if c.kind == 'valu':
            if p.extra.get('trans') and not c.extra.get('trans') and (pv & cr): n = max(n, 1)
            if c.extra.get('readlane') and (pv & cr): n = max(n, 1)
            if c.extra.get('permlane') and (pv & cr): n = max(n, 2)
            if c.extra.get('dpp') and (pv & cr): n = max(n, 2)
            if ps & cr:
                n = max(n, 4 if c.extra.get('readlane') else 2)
        if c.kind == 'vmem' and (ps & cr): n = max(n, 5)
        if c.kind == 'salu' and (ps & cr): n = max(n, 3)
        if ('s', 126) in ps and c.kind == 'mfma': n = max(n, 4)
        if ('s', 126) in ps and c.kind == 'valu' and c.extra.get('dpp'): n = max(n, 5)
    if p.kind == 'mfma':
        lat = {2: 5, 4: 8, 8: 12, 16: 20}[p.passes]
        if c.kind in ('valu', 'ds', 'vmem'):
            if pw & (cr | cw): n = max(n, lat)
        if c.kind == 'mfma':
            ab = set(c.extra['A']) | set(c.extra['B'])
            if pw & ab: n = max(n, lat)
            cc = set(c.srcC)
            if pw & cc:
                if not (list(p.wr) == list(c.srcC) and p.passes == c.passes):
                    n = max(n, {2: 4, 4: 6, 8: 10, 16: 18}[p.passes])
                elif p.passes == 2: n = max(n, 2)
            elif pw & cw:
                n = max(n, {2: 4, 4: 6, 8: 10, 16: 18}[p.passes])
        if c.kind == 'valu' and (set(p.srcC) & cw): n = max(n, {2: 1, 4: 3, 8: 7, 16: 15}[p.passes])
    if p.kind == 'salu':
        if ('s', 124) in ps and c.kind == 'vmem' and c.extra.get('lds'): n = max(n, 1)
    if p.kind == 'vmem' and p.extra.get('widestore'):
        if c.kind == 'valu' and (set(p.extra['widestore']) & cw): n = max(n, 2)
        elif (set(p.extra['widestore']) & cw): n = max(n, 1)
    return n

WINDOW = 24

class G:
    def __init__(self):
        self.out = []
        self.nops_added = 0
    def _recent(self):
        r = []
        for x in reversed(self.out):
            if isinstance(x, Ins):
                r.append(x)
                if len(r) >= WINDOW: break
            elif x.endswith(':') or x.startswith('.p2align'):
                continue
        return r
    def I(self, text):
        for line in text.split('\n'):
            line = line.strip()
            if not line or line.startswith(';'): continue
            c = Ins(line)
            dist = 0; need = 0
            for p in self._recent():
                k = need_states(p, c)
                if k - dist > need: need = k - dist
                dist += p.states
                if dist > 22: break
            while need > 0:
                k = min(need, 16)
                self.out.append(Ins(f's_nop {k-1}')); self.nops_added += k
                need -= k
            self.out.append(c)
    def label(self, name): self.out.append(name + ':')
    def raw(self, text): self.out.append(text)
    def align(self, n): self.out.append(f'.p2align {n}')
    def text(self):
        l = []
        for x in self.out:
            l.append(('    ' + x.text) if isinstance(x, Ins) else x)
        return '\n'.join(l)
    def check_branches(self):
        idx = {x[:-1]: i for i, x in enumerate(self.out) if isinstance(x, str) and x.endswith(':')}
        probs = []
        for i, x in enumerate(self.out):
            if isinstance(x, Ins) and (x.mn.startswith('s_cbranch') or x.mn == 's_branch'):
                tgt = x.text.split()[1]
                if tgt not in idx: continue
                pre = [y for y in self.out[max(0, i - 60):i + 1] if isinstance(y, Ins)][-WINDOW:]
                post = [y for y in self.out[idx[tgt]:idx[tgt] + 60] if isinstance(y, Ins)][:WINDOW]
                seq = pre + post
                for ci in range(len(pre), len(seq)):
                    dist = 0
                    for pi in range(ci - 1, -1, -1):
                        if pi < len(pre):
                            k = need_states(seq[pi], seq[ci])
                            if k > dist: probs.append((seq[pi].text, seq[ci].text, k, dist, tgt))
                        dist += seq[pi].states
                        if dist > 22: break
        return probs

class LdsQ:
    def __init__(self, g, init=()):
        self.g = g; self.q = list(init)
    def issue(self, text, tag):
        self.g.I(text); self.q.append(tag)
    def need(self, *tags):
        last = -1
        for t in tags:
            if t in self.q: last = max(last, len(self.q) - 1 - self.q[::-1].index(t))
        if last < 0: return
        n = len(self.q) - 1 - last
        assert n <= 15, (n, self.q)
        self.g.I(f's_waitcnt lgkmcnt({n})')
        self.q = self.q[last + 1:]
    def drain(self):
        if self.q:
            self.g.I('s_waitcnt lgkmcnt(0)'); self.q = []
```

```python
from asmgen import *

QSCALE = 0.12751743
import struct
def f32bits(x): return struct.unpack('<I', struct.pack('<f', x))[0]

ITEM_STRIDE = 71680
KSLOT = 8704
VSLOT = 9216
VOFF = 4 * KSLOT
XBASE = 17408
XSLOT = 24576
WBASE = 89088
WSLOT = 16384
FLAG_LDS = 163776

vKADDR, vVADDR, vDK, vDV = 12, 11, 10, 9
vL = 13
vVR = 16
vKR = 28
vNEG = 40
vP = 52
vS = [64, 88]
vQ = 112
vQACC = 16
vWA = 112
vXA = 120
vXD = 122
vWD = 125
aAR = 0
aXF = 16

def S(par, T2, qt): return vS[par] + (T2 * 3 + qt) * 4
def r4(f, b): return f'{f}[{b}:{b+3}]'
def r2(f, b): return f'{f}[{b}:{b+1}]'
MF = 'v_mfma_f32_16x16x32_bf16'

def interleave(g, groups, spread, placed=None):
    placed = placed or {}
    total = sum(len(m) for _, m in groups)
    nf = len(spread); fi = 0; k = 0
    def em(f):
        if callable(f): f()
        else: g.I(f)
    for pre, ms in groups:
        if pre: pre()
        for m in ms:
            g.I(m); k += 1
            for f in placed.get(k, []): em(f)
            tgt = min(nf, (k * nf + total - 1) // total) if total else nf
            while fi < tgt:
                em(spread[fi]); fi += 1
    while fi < nf:
        em(spread[fi]); fi += 1

PROF = False
OPT = set()
def gen_k1(g, name):
    I = g.I
    stamps = []
    def stamp(tag):
        if not PROF: return
        i = len(stamps); stamps.append(tag)
        I(f's_memtime s[{80+2*i}:{81+2*i}]')
    I('s_cmp_ge_u32 s2, 256')
    I('s_cbranch_scc1 L_k1_end')
    if PROF: I('s_memrealtime s[98:99]')
    stamp('start')
    I('s_load_dwordx8 s[44:51], s[0:1], 0')
    I('s_load_dwordx8 s[52:59], s[0:1], 40')
    I('s_load_dwordx2 s[60:61], s[0:1], 96')
    I('v_lshrrev_b32 v1, 6, v0')
    I('v_and_b32 v2, 63, v0')
    I('v_readfirstlane_b32 s3, v1')
    I('s_and_b32 s10, s2, 7')
    I('s_lshr_b32 s11, s2, 3')
    I('s_lshr_b32 s6, s10, 2')
    I('s_and_b32 s10, s10, 3')
    I('s_and_b32 s7, s11, 7')
    I('s_lshr_b32 s11, s11, 3')
    I('s_lshl_b32 s8, s10, 3')
    I('s_lshl_b32 s11, s11, 1')
    I('s_add_u32 s8, s8, s11')
    I('s_lshr_b32 s4, s3, 2')
    I('s_and_b32 s5, s3, 3')
    I('s_add_u32 s9, s8, s4')
    I('s_waitcnt lgkmcnt(0)')
    I('s_cmp_eq_u32 s6, 0')
    I('s_cselect_b64 s[12:13], s[44:45], s[52:53]')
    I('s_cselect_b64 s[14:15], s[46:47], s[54:55]')
    I('s_cselect_b64 s[16:17], s[48:49], s[56:57]')
    I('s_cselect_b64 s[18:19], s[50:51], s[58:59]')
    I('s_mul_i32 s40, s7, 245760')
    I('s_add_u32 s20, s12, s40')
    I('s_addc_u32 s21, s13, 0')
    I('s_mov_b32 s22, 245760')
    I('s_mov_b32 s23, 0x20000')
    I('s_lshl_b32 s40, s8, 8')
    I('s_add_u32 s24, s18, s40')
    I('s_addc_u32 s25, s19, 0')
    I('s_sub_u32 s26, 5242880, s40')
    I('s_mov_b32 s27, 0x20000')
    I('s_lshl_b32 s40, s7, 5')
    I('s_add_u32 s40, s40, s9')
    I('s_lshr_b32 s41, s40, 15')
    I('s_lshl_b32 s42, s40, 17')
    I('s_add_u32 s28, s14, s42')
    I('s_addc_u32 s29, s15, s41')
    I('s_mov_b32 s30, 131072')
    I('s_mov_b32 s31, 0x20000')
    I('s_add_u32 s32, s16, s42')
    I('s_addc_u32 s33, s17, s41')
    I('s_mov_b32 s34, 131072')
    I('s_mov_b32 s35, 0x20000')
    I('s_lshl_b32 s42, s6, 8')
    I('s_add_u32 s42, s42, s40')
    I('s_mul_i32 s42, s42, 49152')
    I('s_mul_i32 s43, s5, 12288')
    I('s_add_u32 s42, s42, s43')
    I('s_add_u32 s36, s60, s42')
    I('s_addc_u32 s37, s61, 0')
    I('s_mov_b32 s38, 12288')
    I('s_mov_b32 s39, 0x20000')

    I('v_and_b32 v3, 15, v2')
    I('v_lshrrev_b32 v4, 4, v2')
    I('s_mul_i32 s40, s3, 24')
    I('v_lshrrev_b32 v5, 3, v2')
    I('v_and_b32 v6, 7, v2')
    for e in range(3):
        I(f'v_add_u32 v7, s40, v5')
        if e: I(f'v_add_u32 v7, {8*e}, v7')
        I('v_bfe_u32 v8, v7, 1, 3')
        I('v_xor_b32 v8, v8, v6')
        I('v_lshlrev_b32 v8, 4, v8')
        I('v_mul_u32_u24 v7, 1280, v7')
        I(f'v_add_u32 v{vXD+e}, v7, v8')
    I('s_lshl_b32 s40, s3, 2')
    I('v_lshrrev_b32 v5, 5, v2')
    for e in range(2):
        I(f'v_add_u32 v7, s40, v5')
        if e: I('v_add_u32 v7, 2, v7')
        I('v_and_b32 v8, 1, v7')
        I('v_bfe_u32 v6, v7, 1, 1')
        I('v_lshl_or_b32 v8, v6, 2, v8')
        I('v_bfe_u32 v6, v7, 3, 1')
        I('v_lshl_or_b32 v8, v6, 3, v8')
        I('v_xor_b32 v8, v8, v3')
        I('v_lshlrev_b32 v8, 4, v8')
        I('v_bfe_u32 v6, v2, 4, 1')
        I('v_lshl_or_b32 v8, v6, 8, v8')
        I('v_lshlrev_b32 v7, 13, v7')
        I(f'v_add_u32 v{vWD+e}, v7, v8')
    I('s_mul_i32 s40, s5, 48')
    I('v_add_u32 v7, s40, v3')
    I('v_lshlrev_b32 v7, 7, v7')
    I('v_lshrrev_b32 v8, 1, v3')
    I('v_xor_b32 v8, v8, v4')
    I('v_lshlrev_b32 v8, 4, v8')
    I('v_add_u32 v7, v7, v8')
    I(f'v_add_u32 v{vXA}, {XBASE}, v7')
    I(f'v_xor_b32 v{vXA+1}, 64, v{vXA}')
    I('v_lshrrev_b32 v5, 2, v3')
    I('v_and_b32 v6, 3, v3')
    I('v_and_b32 v7, 1, v5')
    I('v_lshrrev_b32 v8, 1, v5')
    I('v_lshl_or_b32 v7, v8, 2, v7')
    I('v_and_b32 v8, 1, v4')
    I('v_lshl_or_b32 v7, v8, 3, v7')
    I('v_xor_b32 v7, v7, v6')
    I('v_lshlrev_b32 v7, 4, v7')
    I('v_and_b32 v8, 1, v6')
    I('v_lshl_or_b32 v7, v8, 3, v7')
    I('v_lshl_add_u32 v8, v4, 3, v5')
    I('v_lshl_add_u32 v7, v8, 9, v7')
    I('s_lshl_b32 s40, s4, 8')
    I(f's_add_u32 s40, s40, {WBASE}')
    I(f'v_add_u32 v{vWA}, s40, v7')
    for s in range(4):
        for p2 in range(2):
            if s == 0 and p2 == 0: continue
            I(f'v_xor_b32 v{vWA+2*s+p2}, {s*64 ^ p2*8}, v{vWA}')
    I(f's_mul_i32 s41, s4, {ITEM_STRIDE}')
    I('v_mul_u32_u24 v7, 1088, v5')
    I('v_lshl_add_u32 v7, v6, 8, v7')
    I('v_xor_b32 v8, v4, v6')
    I('v_lshl_add_u32 v7, v8, 4, v7')
    I(f'v_add_u32 v{vKADDR}, s41, v7')
    I('v_mul_u32_u24 v7, 1152, v4')
    I('v_lshl_add_u32 v7, v5, 5, v7')
    I('v_lshl_add_u32 v7, v6, 3, v7')
    I(f's_add_u32 s42, s41, {VOFF}')
    I(f'v_add_u32 v{vVADDR}, s42, v7')
    I('s_lshl_b32 s40, s5, 11')
    I('v_xor_b32 v7, v3, v4')
    I('v_lshlrev_b32 v7, 4, v7')
    I('v_lshl_add_u32 v7, v4, 8, v7')
    I(f'v_add_u32 v{vDK}, s40, v7')
    I('v_lshrrev_b32 v7, 3, v2')
    I('v_lshlrev_b32 v7, 5, v7')
    I('v_bfe_u32 v8, v2, 1, 2')
    I('v_lshl_add_u32 v7, v8, 8, v7')
    I('v_and_b32 v8, 1, v2')
    I('v_lshl_add_u32 v7, v8, 4, v7')
    I(f'v_add_u32 v{vDV}, s40, v7')
    I('v_and_b32 v7, 1, v4')
    I('v_cmp_eq_u32 s[62:63], 1, v7')
    I('s_mul_i32 s64, s3, 3072')
    I(f's_add_u32 s64, s64, {XBASE}')
    I('s_lshl_b32 s65, s3, 11')
    I(f's_add_u32 s65, s65, {WBASE}')
    I(f's_mul_i32 s66, s5, {2*1088}')
    I('s_add_u32 s66, s66, s41')
    I(f's_mul_i32 s67, s5, {2*1152}')
    I('s_add_u32 s67, s67, s42')
    I(f's_mov_b32 s68, {f32bits(QSCALE)}')
    I(f's_mov_b32 s69, {f32bits(QSCALE)}')
    I('s_mov_b32 s73, s26')
    I('s_mov_b32 s74, 245760')
    I('s_mov_b32 s76, 4096')
    I('s_mov_b32 s77, 8192')

    def dma_x(slot, soff):
        for e in range(3):
            I(f's_add_u32 m0, s64, {slot*XSLOT + e*1024}')
            I(f'buffer_load_dwordx4 v{vXD+e}, s[20:23], {soff} offen lds')
    def dma_w(slot, soff):
        for e in range(2):
            I(f's_add_u32 m0, s65, {slot*WSLOT + e*1024}')
            I(f'buffer_load_dwordx4 v{vWD+e}, s[24:27], {soff} offen lds')
    def dma_k(slot):
        I(f's_add_u32 m0, s66, {slot*KSLOT}')
        I(f'buffer_load_dwordx4 v{vDK}, s[28:31], 0 offen nt lds')
        I(f's_add_u32 m0, s66, {slot*KSLOT + 64}')
        I(f'buffer_load_dwordx4 v{vDK}, s[28:31], 0 offen offset:1024 nt lds')
        I(f'v_add_u32 v{vDK}, 8192, v{vDK}')
    def dma_v(slot):
        I(f's_add_u32 m0, s67, {slot*VSLOT}')
        I(f'buffer_load_dwordx4 v{vDV}, s[32:35], 0 offen nt lds')
        I(f's_add_u32 m0, s67, {slot*VSLOT + 128}')
        I(f'buffer_load_dwordx4 v{vDV}, s[32:35], 0 offen offset:1024 nt lds')
        I(f'v_add_u32 v{vDV}, 8192, v{vDV}')

    I('s_mov_b32 s70, 0')
    I('s_mov_b32 s71, 0')
    dma_x(0, 's70'); I('s_add_u32 s70, s70, 128')
    dma_w(0, 's71'); I('s_add_u32 s71, s71, 262144')
    dma_w(1, 's71'); I('s_add_u32 s71, s71, 262144')
    dma_w(2, 's71'); I('s_add_u32 s71, s71, 262144')
    dma_x(1, 's70'); I('s_add_u32 s70, s70, 128')
    for i in range(96): I(f'v_mov_b32 v{vQACC+i}, 0')
    I('s_waitcnt vmcnt(7)')
    I('s_barrier')
    stamp('first data')
    lq = LdsQ(g)
    def rd_xf(buf, slot, e2):
        for t in range(3):
            lq.issue(f'ds_read_b128 {r4("a", aXF + buf*12 + t*4)}, v{vXA+e2} offset:{slot*XSLOT + t*2048}', f'x{buf}_{t}')
    def rd_af(f, slot, ring):
        a = aAR + ring * 4
        va = vWA + f
        lq.issue(f'ds_read_b64_tr_b16 {r2("a", a)}, v{va} offset:{slot*WSLOT}', f'A{f}a')
        lq.issue(f'ds_read_b64_tr_b16 {r2("a", a+2)}, v{va} offset:{slot*WSLOT + 2048}', f'A{f}b')
    rd_xf(0, 0, 0)
    NPRE = 3
    for f in range(NPRE): rd_af(f, 0, f % 4)
    q_init = list(lq.q)
    I('s_mov_b32 s72, 0')
    g.align(6)
    g.label('L_q_loop')
    for u in range(4):
        if 'q_nowait' not in OPT: I(f's_waitcnt vmcnt({5 if u % 2 == 0 else 2})')
        if 'q_nobar' not in OPT: I('s_barrier')
        placed = {}
        def f_dmaw(u=u):
            I('s_cmp_lt_u32 s71, 5242880')
            I('s_cselect_b32 s26, s73, 0')
            dma_w((u + 3) % 4, 's71'); I('s_add_u32 s71, s71, 262144')
        placed.setdefault(4, []).append(f_dmaw)
        if u % 2 == 1:
            def f_dmax(u=u):
                I('s_cmp_lt_u32 s70, 1280')
                I('s_cselect_b32 s22, s74, 0')
                dma_x(((u + 3) // 2) & 1, 's70'); I('s_add_u32 s70, s70, 128')
            placed.setdefault(10, []).append(f_dmax)
        else:
            def f_kp(u=u):
                I('s_cmp_lg_u32 s72, 1')
                I(f's_cbranch_scc1 L_q_nok{u}')
                dma_k(u // 2)
                g.label(f'L_q_nok{u}')
            placed.setdefault(10, []).append(f_kp)
        xb = u & 1
        nu = (u + 1) % 4
        placed.setdefault(2, []).append(lambda xb=xb, nu=nu: rd_xf(1 - xb, nu >> 1, nu & 1))
        groups = []
        for f in range(8):
            def pre(f=f, u=u, nu=nu):
                nf = f + NPRE
                if nf < 8: rd_af(nf, u, nf % 4)
                else: rd_af(nf - 8, nu, nf % 4)
                if f == 0: lq.need(*([f'x{u&1}_{t}' for t in range(3)] + ['A0a', 'A0b']))
                else: lq.need(f'A{f}a', f'A{f}b')
            ms = [f'{MF} {r4("v", vQACC + (f*3+t)*4)}, {r4("a", aAR + (f % 4)*4)}, {r4("a", aXF + xb*12 + t*4)}, {r4("v", vQACC + (f*3+t)*4)}' for t in range(3)]
            groups.append((pre, ms))
        if 'q_nodma' in OPT: placed = {2: placed[2]}
        interleave(g, groups, [], placed)
    assert lq.q == [t for t in q_init if not t.startswith('x')], (lq.q, q_init)
    I('s_add_u32 s72, s72, 1')
    I('s_cmp_lt_u32 s72, 5')
    I('s_cbranch_scc1 L_q_loop')

    stamp('q loop end')
    I('s_waitcnt vmcnt(0) lgkmcnt(0)')
    lq.q = []
    I('s_barrier')
    dma_v(0); dma_k(2); dma_v(1); dma_k(3); dma_v(2)
    tA, tB = 1, 5
    for s in range(4):
        for qt in range(3):
            A = vQACC + ((2*s) * 3 + qt) * 4
            B = vQACC + ((2*s+1) * 3 + qt) * 4
            D = vQ + (qt * 4 + s) * 4
            for b in (A, B):
                I(f'v_pk_mul_f32 {r2("v", b)}, {r2("v", b)}, s[68:69]')
                I(f'v_pk_mul_f32 {r2("v", b+2)}, {r2("v", b+2)}, s[68:69]')
            I(f'v_cvt_pk_bf16_f32 v1, v{A}, v{A+1}')
            I(f'v_cvt_pk_bf16_f32 v2, v{A+2}, v{A+3}')
            I(f'v_cvt_pk_bf16_f32 v3, v{B}, v{B+1}')
            I(f'v_cvt_pk_bf16_f32 v4, v{B+2}, v{B+3}')
            I(f'v_cndmask_b32 v{D}, v1, v3, s[62:63]')
            I(f'v_cndmask_b32 v{D+1}, v2, v4, s[62:63]')
            I(f'v_cndmask_b32 v{D+2}, v3, v1, s[62:63]')
            I(f'v_cndmask_b32 v{D+3}, v4, v2, s[62:63]')
    for i in range(96): I(f'v_accvgpr_write_b32 a{i}, 0')
    for i in range(3): I(f'v_mov_b32 v{vL+i}, 0')

    def Qf(qt, s): return vQ + (qt * 4 + s) * 4
    def rd_kf(f, slot):
        T2, s = f >> 2, f & 3
        lq.issue(f'ds_read_b128 {r4("v", vKR + (f % 3)*4)}, v{vKADDR} offset:{slot*KSLOT + T2*4352 + s*64}', f'K{f}')
    def rd_vf(dt, slot):
        a = vVR + (dt % 3) * 4
        lq.issue(f'ds_read_b64_tr_b16 {r2("v", a)}, v{vVADDR} offset:{slot*VSLOT + dt*128}', f'V{dt}a')
        lq.issue(f'ds_read_b64_tr_b16 {r2("v", a+2)}, v{vVADDR} offset:{slot*VSLOT + 4608 + dt*128}', f'V{dt}b')
    def qk_groups(par, slot, first, next_reads):
        groups = []
        for f in range(8):
            T2, s = f >> 2, f & 3
            def pre(f=f):
                if f + 2 < 8: rd_kf(f + 2, slot)
                else: next_reads(f + 2 - 8)
                lq.need(f'K{f}')
            ms = []
            for qt in range(3):
                D = r4('v', S(par, T2, qt))
                C = D if s else ('0' if first else r4('v', vNEG + qt*4))
                ms.append(f'{MF} {D}, {r4("v", vKR + (f % 3)*4)}, {r4("v", Qf(qt, s))}, {C}')
            groups.append((pre, ms))
        return groups
    def pv_groups(slot, next_reads):
        groups = []
        for dt in range(8):
            def pre(dt=dt):
                if dt + 2 < 8: rd_vf(dt + 2, slot)
                else: next_reads(dt + 2 - 8)
                lq.need(f'V{dt}a', f'V{dt}b')
            ms = [f'{MF} {r4("a", (dt*3+qt)*4)}, {r4("v", vVR + (dt % 3)*4)}, {r4("v", vP + qt*4)}, {r4("a", (dt*3+qt)*4)}' for qt in range(3)]
            groups.append((pre, ms))
        return groups
    def exp_add(par, T2):
        ex, ad = [], []
        for e in range(4):
            for qt in range(3):
                r = S(par, T2, qt) + e
                ex.append(f'v_exp_f32 v{r}, v{r}')
                ad.append(f'v_add_f32 v{vL+qt}, v{vL+qt}, v{r}')
        out = []
        for i in range(12 + 2):
            if i < 12: out.append(ex[i])
            if i >= 2: out.append(ad[i-2])
        return out
    def cvts(par, T2):
        out = []
        for qt in range(3):
            b = S(par, T2, qt)
            out.append(f'v_cvt_pk_bf16_f32 v{vP + qt*4 + 2*T2}, v{b}, v{b+1}')
            out.append(f'v_cvt_pk_bf16_f32 v{vP + qt*4 + 2*T2 + 1}, v{b+2}, v{b+3}')
        return out

    stamp('q conv end')
    rd_kf(0, 0); rd_kf(1, 0)
    interleave(g, qk_groups(0, 0, True, lambda i: None), [])
    for qt in range(3):
        a, b = S(0, 0, qt), S(0, 1, qt)
        m = 1 + qt
        I(f'v_max3_f32 v{m}, v{a}, v{a+1}, v{a+2}')
        I(f'v_max3_f32 v{m}, v{m}, v{a+3}, v{b}')
        I(f'v_max3_f32 v{m}, v{m}, v{b+1}, v{b+2}')
        I(f'v_max_f32 v{m}, v{m}, v{b+3}')
    for qt in range(3):
        m = 1 + qt; t = 4 + qt
        I(f'v_mov_b32 v{t}, v{m}')
    for qt in range(3):
        m = 1 + qt; t = 4 + qt
        I(f'v_permlane16_swap_b32 v{m}, v{t}')
    for qt in range(3):
        m = 1 + qt; t = 4 + qt
        I(f'v_max_f32 v{m}, v{m}, v{t}')
    for qt in range(3):
        m = 1 + qt; t = 4 + qt
        I(f'v_mov_b32 v{t}, v{m}')
    for qt in range(3):
        m = 1 + qt; t = 4 + qt
        I(f'v_permlane32_swap_b32 v{m}, v{t}')
    for qt in range(3):
        m = 1 + qt; t = 4 + qt
        I(f'v_max_f32 v{m}, v{m}, v{t}')
    for qt in range(3):
        for e in range(4): I(f'v_sub_f32 v{vNEG + qt*4 + e}, 0, v{1+qt}')
    for T2 in range(2):
        for qt in range(3):
            for e in range(4):
                r = S(0, T2, qt) + e
                I(f'v_sub_f32 v{r}, v{r}, v{1+qt}')
    I('s_waitcnt vmcnt(8)')
    I('s_barrier')
    dma_k(0)
    rd_kf(0, 1); rd_kf(1, 1)
    for x in exp_add(0, 0): I(x)
    a_init = list(lq.q)

    def stage_A(u, with_mfma=True):
        par = u & 1
        sp = cvts(par, 0) + exp_add(par, 1) + cvts(par, 1)
        vslot = u % 4
        if with_mfma:
            interleave(g, qk_groups(1 - par, (u + 1) % 4, False, lambda i: rd_vf(i, vslot)), sp)
        else:
            rd_vf(0, vslot); rd_vf(1, vslot)
            for x in sp: I(x)
    def stage_B(u, last=False):
        par = u & 1
        placed = {}
        sp = []
        if not last:
            if 'a_nodma' not in OPT:
                placed[1] = [lambda: dma_v((u + 3) % 4)]
                placed[4] = [lambda: dma_k((u + 1) % 4)]
            sp = exp_add(1 - par, 0)
        kslot = (u + 2) % 4
        nr = (lambda i: rd_kf(i, kslot)) if not last else (lambda i: None)
        interleave(g, pv_groups(u % 4, nr), sp, placed)

    stamp('att loop start')
    I('s_mov_b32 s72, 0')
    g.align(6)
    g.label('L_att_loop')
    for u in range(4):
        if u == 3:
            I('s_cmp_eq_u32 s72, 3')
            I('s_cbranch_scc1 L_att_tail')
        stage_A(u)
        if 'a_nowait' not in OPT: I('s_waitcnt vmcnt(6)')
        if 'a_nobar' not in OPT: I('s_barrier')
        stage_B(u)
        if u == 2: q_at_exit = list(lq.q)
    assert lq.q == a_init, (lq.q, a_init)
    I('s_add_u32 s72, s72, 1')
    I('s_branch L_att_loop')
    g.label('L_att_tail')
    lq.q = q_at_exit
    stage_A(3, with_mfma=False)
    stage_B(3, last=True)
    stamp('att end')
    for qt in range(3): I(f'v_mov_b32 v{4+qt}, v{vL+qt}')
    for qt in range(3): I(f'v_permlane16_swap_b32 v{vL+qt}, v{4+qt}')
    for qt in range(3): I(f'v_add_f32 v{vL+qt}, v{vL+qt}, v{4+qt}')
    for qt in range(3): I(f'v_mov_b32 v{4+qt}, v{vL+qt}')
    for qt in range(3): I(f'v_permlane32_swap_b32 v{vL+qt}, v{4+qt}')
    for qt in range(3): I(f'v_add_f32 v{vL+qt}, v{vL+qt}, v{4+qt}')
    for qt in range(3): I(f'v_rcp_f32 v{vL+qt}, v{vL+qt}')
    I('v_and_b32 v8, 63, v0')
    I('v_lshlrev_b32 v8, 4, v8')
    tb = 64
    k = 0
    for qt in range(3):
        for s in range(4):
            t = tb + (k % 4) * 12; k += 1
            for half in range(2):
                a = ((2*s + half) * 3 + qt) * 4
                for e in range(4): I(f'v_accvgpr_read_b32 v{t + half*4 + e}, a{a+e}')
            for i in range(8): I(f'v_mul_f32 v{t+i}, v{t+i}, v{vL+qt}')
            for i in range(4): I(f'v_cvt_pk_bf16_f32 v{t+8+i}, v{t+2*i}, v{t+2*i+1}')
            I(f'buffer_store_dwordx4 {r4("v", t+8)}, v8, s[36:39], 0 offen offset:{(qt*4+s)*1024 % 4096}' if (qt*4+s) < 4 else
              f'buffer_store_dwordx4 {r4("v", t+8)}, v8, s[36:39], s{75 + qt} offen offset:{(s*1024)}')
    I('s_waitcnt vmcnt(0)')
    stamp('end')
    if PROF:
        I('s_memrealtime s[100:101]')
        I('s_waitcnt lgkmcnt(0)')
        I('s_lshl_b32 s40, s2, 3'); I('s_add_u32 s40, s40, s3'); I('s_lshl_b32 s40, s40, 6')
        I('s_add_u32 s40, s40, 0x8000000')
        I('s_add_u32 s44, s60, s40'); I('s_addc_u32 s45, s61, 0')
        for i in range(len(stamps)):
            I(f's_sub_u32 s40, s{80+2*i}, s80'); I(f'v_mov_b32 v{16+i}, s40')
        I('v_mov_b32 v30, s98'); I('v_mov_b32 v31, s100')
        I('v_mov_b32 v1, 0')
        I('v_cmp_eq_u32 vcc, 0, v0') if False else None
        for i in range(0, 8, 4):
            I(f'global_store_dwordx4 v1, v[{16+i}:{19+i}], s[44:45] offset:{i*4}')
        I('global_store_dwordx2 v1, v[30:31], s[44:45] offset:32')
        I('s_waitcnt vmcnt(0)')
        g.stamps = stamps
    g.label('L_k1_end')
    I('s_endpgm')
```

```python
from asmgen import *
from k1 import interleave, r4, r2, MF
import k1

CH = 20480
NRING = 3
HALF = NRING * CH
PART_OFF = 0x2000000
PART_SZ = 122880

vBF = 16
vAE, vAO = 8, 9
vWD = 10
vOB = 15
vAR = 64

def gen_k2(g, name):
    I = g.I
    stamps = []
    def stamp(tag):
        if not k1.PROF: return
        i = len(stamps); stamps.append(tag)
        I(f's_memtime s[{80+2*i}:{81+2*i}]')
    I('s_cmp_ge_u32 s2, 256')
    I('s_cbranch_scc1 L_k2_end')
    if k1.PROF: I('s_memrealtime s[98:99]')
    stamp('start')
    I('s_load_dwordx2 s[44:45], s[0:1], 32')
    I('s_load_dwordx2 s[46:47], s[0:1], 72')
    I('s_load_dwordx2 s[60:61], s[0:1], 96')
    I('v_lshrrev_b32 v1, 6, v0')
    I('v_and_b32 v2, 63, v0')
    I('v_readfirstlane_b32 s3, v1')
    I('s_and_b32 s10, s2, 7')
    I('s_lshr_b32 s11, s2, 3')
    I('s_lshr_b32 s6, s10, 2')
    I('s_and_b32 s10, s10, 3')
    I('s_and_b32 s7, s11, 7')
    I('s_lshr_b32 s11, s11, 3')
    I('s_lshr_b32 s4, s3, 2')
    I('s_and_b32 s5, s3, 3')
    I('s_lshl_b32 s8, s10, 3')
    I('s_lshl_b32 s9, s4, 2')
    I('s_add_u32 s8, s8, s9')
    I('s_waitcnt lgkmcnt(0)')
    I('s_cmp_eq_u32 s6, 0')
    I('s_cselect_b64 s[12:13], s[44:45], s[46:47]')
    I('s_mul_i32 s40, s8, 163840')
    I('s_mul_i32 s41, s11, 320')
    I('s_add_u32 s40, s40, s41')
    I('s_add_u32 s20, s12, s40')
    I('s_addc_u32 s21, s13, 0')
    I('s_sub_u32 s22, 655360, s41')
    I('s_mov_b32 s23, 0x20000')
    I('s_lshl_b32 s40, s6, 3')
    I('s_add_u32 s40, s40, s7')
    I('s_lshl_b32 s40, s40, 5')
    I('s_add_u32 s40, s40, s8')
    I('s_mul_i32 s40, s40, 49152')
    I('s_mul_i32 s41, s5, 12288')
    I('s_add_u32 s40, s40, s41')
    I('s_add_u32 s24, s60, s40')
    I('s_addc_u32 s25, s61, 0')
    I(f's_mov_b32 s26, {3*49152+12288}')
    I('s_mov_b32 s27, 0x20000')
    I('s_lshl_b32 s40, s6, 3')
    I('s_add_u32 s40, s40, s7')
    I('s_lshl_b32 s40, s40, 2')
    I('s_add_u32 s40, s40, s11')
    I('s_lshl_b32 s40, s40, 2')
    I('s_add_u32 s40, s40, s10')
    I(f's_mul_i32 s40, s40, {PART_SZ}')
    I('s_mul_i32 s41, s5, 30720')
    I('s_add_u32 s40, s40, s41')
    I(f's_add_u32 s40, s40, {PART_OFF}')
    I('s_add_u32 s28, s60, s40')
    I('s_addc_u32 s29, s61, 0')
    I('s_mov_b32 s30, 30720')
    I('s_mov_b32 s31, 0x20000')
    I('v_and_b32 v3, 15, v2')
    I('v_lshrrev_b32 v4, 4, v2')
    I(f'v_lshlrev_b32 v{vOB}, 4, v2')
    I('s_mul_i32 s40, s5, 20480')
    I('s_mov_b32 s41, 3277')
    for e in range(5):
        I(f'v_add_u32 v5, {64*e}, v2')
        I('v_mul_u32_u24 v6, s41, v5') if False else I('v_mul_lo_u32 v6, v5, s41')
        I('v_lshrrev_b32 v6, 16, v6')
        I('v_mul_u32_u24 v7, 20, v6')
        I('v_sub_u32 v5, v5, v7')
        I('v_bfe_u32 v7, v6, 2, 1')
        I('v_lshlrev_b32 v7, 1, v7')
        I('v_xor_b32 v5, v5, v7')
        I('v_lshlrev_b32 v5, 4, v5')
        I('v_mul_u32_u24 v6, 1280, v6')
        I('v_add_u32 v5, v5, v6')
        I(f'v_add_u32 v{vWD+e}, s40, v5')
    I('v_lshrrev_b32 v5, 2, v3')
    I('v_and_b32 v6, 3, v3')
    I('v_lshl_add_u32 v7, v4, 2, v5')
    I('v_mul_u32_u24 v7, 320, v7')
    I('v_lshl_add_u32 v7, v6, 3, v7')
    I(f's_mul_i32 s41, s4, {HALF}')
    I('v_add_u32 v7, s41, v7')
    I('v_and_b32 v5, 1, v4')
    I('v_lshlrev_b32 v5, 5, v5')
    I(f'v_add_u32 v{vAE}, v7, v5')
    I(f'v_sub_u32 v{vAO}, v7, v5')
    I('s_mul_i32 s64, s5, 5120')
    I('s_add_u32 s64, s64, s41')
    I('s_mov_b32 s73, s22')

    vq = []
    def vneed(tag):
        nonlocal vq
        if tag not in vq: return
        last = len(vq) - 1 - vq[::-1].index(tag)
        I(f's_waitcnt vmcnt({len(vq) - 1 - last})')
        vq = vq[last+1:]
    def dma_w(c):
        out = []
        def one(e):
            I(f's_mov_b32 s70, {c*81920}')
            I(f's_add_u32 m0, s64, {(c % NRING)*CH + e*1024}')
            I(f'buffer_load_dwordx4 v{vWD+e}, s[20:23], s70 offen lds')
            vq.append(f'W{c}')
        return [lambda e=e: one(e) for e in range(5)]
    def ld_b(ks):
        if ks >= 16: return
        for qt in range(3):
            b = vBF + (ks % 4)*12 + qt*4
            I(f's_mov_b32 s{75+qt}, {(ks >> 2)*49152 + qt*4096 + (ks & 3)*1024}')
            I(f'buffer_load_dwordx4 {r4("v", b)}, v{vOB}, s[24:27], s{75+qt} offen')
            vq.append(f'B{ks}')
    for f in dma_w(0): f()
    ld_b(0); ld_b(1)
    for f in dma_w(1): f()
    ld_b(2)
    for i in range(120): I(f'v_accvgpr_write_b32 a{i}, 0')
    vneed('W0')
    I('s_barrier')
    stamp('first data')
    lq = LdsQ(g)
    def rd_af(f, slot, e2, ring):
        va = vAE if f % 2 == 0 else vAO
        base = slot*CH + e2*10240 + f*32
        a = vAR + ring*4
        lq.issue(f'ds_read_b64_tr_b16 {r2("v", a)}, v{va} offset:{base}', f'A{f}a')
        lq.issue(f'ds_read_b64_tr_b16 {r2("v", a+2)}, v{va} offset:{base + 5120}', f'A{f}b')
    NPRE = 3
    for f in range(NPRE): rd_af(f, 0, 0, f % 4)
    for ks in range(16):
        c, e2 = ks >> 1, ks & 1
        placed = {}
        if e2 == 0:
            vneed(f'W{c+1}')
            I('s_barrier')
            if c + 2 < 8:
                for i, f in enumerate(dma_w(c + 2)): placed.setdefault(4 + 5*i, []).append(f)
        placed.setdefault(2, []).append(lambda ks=ks: ld_b(ks + 3))
        groups = []
        for f in range(10):
            def pre(f=f, ks=ks, c=c, e2=e2):
                nf = f + NPRE
                if nf < 10: rd_af(nf, c % NRING, e2, (10*ks + nf) % 4)
                elif ks < 15:
                    nk = ks + 1
                    rd_af(nf - 10, (nk >> 1) % NRING, nk & 1, (10*nk + nf - 10) % 4)
                if f == 0: vneed(f'B{ks}')
                lq.need(f'A{f}a', f'A{f}b')
            ms = [f'{MF} {r4("a", (f*3+qt)*4)}, {r4("v", vAR + ((10*ks+f) % 4)*4)}, {r4("v", vBF + (ks % 4)*12 + qt*4)}, {r4("a", (f*3+qt)*4)}' for qt in range(3)]
            groups.append((pre, ms))
        interleave(g, groups, [], placed)
    stamp('loop end')
    I('s_waitcnt vmcnt(0) lgkmcnt(0)')
    I('s_barrier')
    I('s_mul_i32 s40, s3, 15360')
    I(f'v_add_u32 v5, s40, v{vOB}')
    I('s_xor_b32 s41, s3, 4')
    I('s_mul_i32 s41, s41, 15360')
    I(f'v_add_u32 v6, s41, v{vOB}')
    I('s_cmp_eq_u32 s4, 0')
    I('s_cbranch_scc0 L_k2_h1')
    for half, lab in ((0, None), (1, 'L_k2_h1')):
        if lab:
            I('s_branch L_k2_red_done')
            g.label(lab)
        send = range(15, 30) if half == 0 else range(0, 15)
        keep = range(0, 15) if half == 0 else range(15, 30)
        for i, t in enumerate(send):
            I(f'ds_write_b128 v5, {r4("a", t*4)} offset:{i*1024}')
        I('s_waitcnt lgkmcnt(0)')
        I('s_barrier')
        for i, t in enumerate(keep):
            I(f'ds_read_b128 {r4("v", 16 + i*4)}, v6 offset:{i*1024}')
        for i, t in enumerate(keep):
            if i == 0 or i == 8 - 0: pass
            I(f's_waitcnt lgkmcnt({min(15, 14 - i)})')
            for e in range(4):
                I(f'v_accvgpr_read_b32 v{80+e}, a{t*4+e}')
            for e in range(4):
                I(f'v_add_f32 v{16+i*4+e}, v{16+i*4+e}, v{80+e}')
            so = t * 1024
            I(f's_mov_b32 s40, {so}')
            I(f'buffer_store_dwordx4 {r4("v", 16+i*4)}, v{vOB}, s[28:31], s40 offen')
    g.label('L_k2_red_done')
    I('s_waitcnt vmcnt(0)')
    stamp('end')
    if k1.PROF:
        I('s_memrealtime s[100:101]')
        I('s_waitcnt lgkmcnt(0)')
        I('s_lshl_b32 s40, s2, 3'); I('s_add_u32 s40, s40, s3'); I('s_lshl_b32 s40, s40, 6')
        I('s_add_u32 s40, s40, 0x8100000')
        I('s_add_u32 s44, s60, s40'); I('s_addc_u32 s45, s61, 0')
        for i in range(len(stamps)):
            I(f's_sub_u32 s40, s{80+2*i}, s80'); I(f'v_mov_b32 v{16+i}, s40')
        I('v_mov_b32 v30, s98'); I('v_mov_b32 v31, s100')
        I('v_mov_b32 v1, 0')
        I('global_store_dwordx4 v1, v[16:19], s[44:45]')
        I('global_store_dwordx2 v1, v[30:31], s[44:45] offset:32')
        I('s_waitcnt vmcnt(0)')
    g.label('L_k2_end')
    I('s_endpgm')

def gen_k3(g, name):
    I = g.I
    I('s_cmp_ge_u32 s2, 256')
    I('s_cbranch_scc1 L_k3_end')
    I('s_load_dwordx2 s[44:45], s[0:1], 80')
    I('s_load_dwordx2 s[60:61], s[0:1], 96')
    I('v_lshrrev_b32 v1, 6, v0')
    I('v_and_b32 v2, 63, v0')
    I('v_readfirstlane_b32 s3, v1')
    I('s_and_b32 s5, s2, 3')
    I('s_lshr_b32 s6, s2, 2')
    I('s_and_b32 s7, s6, 3')
    I('s_lshr_b32 s8, s6, 2')
    I('s_lshr_b32 s9, s8, 3')
    I('s_and_b32 s8, s8, 7')
    I('s_waitcnt lgkmcnt(0)')
    I(f's_mul_i32 s40, s6, {4*PART_SZ}')
    I('s_mul_i32 s41, s5, 30720')
    I('s_add_u32 s40, s40, s41')
    I(f's_add_u32 s40, s40, {PART_OFF}')
    I('s_add_u32 s20, s60, s40'); I('s_addc_u32 s21, s61, 0')
    I(f's_mov_b32 s22, {3*PART_SZ+30720}'); I('s_mov_b32 s23, 0x20000')
    I('s_mov_b32 s24, s44'); I('s_mov_b32 s25, s45'); I(f's_mov_b32 s26, {8*192*1280*2}'); I('s_mov_b32 s27, 0x20000')
    I('v_lshlrev_b32 v3, 4, v2')
    I('v_and_b32 v4, 15, v2'); I('v_lshrrev_b32 v5, 4, v2')
    I('s_mul_i32 s40, s8, 192'); I('s_mul_i32 s41, s5, 48'); I('s_add_u32 s40, s40, s41')
    I('v_add_u32 v4, s40, v4')
    I('v_mul_u32_u24 v4, 2560, v4')
    I('s_mul_i32 s40, s9, 640'); I('s_mul_i32 s41, s7, 160'); I('s_add_u32 s40, s40, s41'); I('s_lshl_b32 s40, s40, 1')
    I('v_lshl_add_u32 v4, v5, 3, v4')
    I('v_add_u32 v4, s40, v4')
    for i in range(8):
        I(f's_add_u32 s42, s3, {4*i}')
        if i == 7:
            I('s_cmp_ge_u32 s42, 30'); I('s_cbranch_scc1 L_k3_end')
        I('s_lshl_b32 s43, s42, 10')
        for j in range(4):
            I(f's_add_u32 s46, s43, {j*PART_SZ}')
            I(f'buffer_load_dwordx4 v[{8+4*j}:{11+4*j}], v3, s[20:23], s46 offen')
        I('s_mul_i32 s47, s42, 43'); I('s_lshr_b32 s47, s47, 7')
        I('s_mul_i32 s48, s47, 3'); I('s_sub_u32 s48, s42, s48')
        I(f's_mul_i32 s48, s48, {16*2560}'); I('s_lshl_b32 s47, s47, 5'); I('s_add_u32 s48, s48, s47')
        I('s_waitcnt vmcnt(0)')
        for e in range(4):
            I(f'v_add_f32 v{8+e}, v{8+e}, v{12+e}')
            I(f'v_add_f32 v{16+e}, v{16+e}, v{20+e}')
        for e in range(4): I(f'v_add_f32 v{8+e}, v{8+e}, v{16+e}')
        I('v_cvt_pk_bf16_f32 v24, v8, v9'); I('v_cvt_pk_bf16_f32 v25, v10, v11')
        I('buffer_store_dwordx2 v[24:25], v4, s[24:27], s48 offen')
    g.label('L_k3_end')
    I('s_endpgm')
```

```python
import sys
sys.path.insert(0, 'gen')
from asmgen import *
import k1

HEADER = open('concat_heads__mha_block_cached__gqa_block_cached__near_ridge.s.ref').read().split('; Override launch')[0]

def kd(name, nv, acc, ns=102):
    return f""".section .rodata,"a"
.p2align 6
.amdhsa_kernel {name}
  .amdhsa_next_free_vgpr {nv}
  .amdhsa_next_free_sgpr {ns}
  .amdhsa_accum_offset {acc}
  .amdhsa_group_segment_fixed_size 0
  .amdhsa_kernarg_size 104
  .amdhsa_user_sgpr_count 2
  .amdhsa_user_sgpr_kernarg_segment_ptr 1
  .amdhsa_system_sgpr_workgroup_id_x 1
.end_amdhsa_kernel
.text
"""

def kernel(name, genfn, nv, acc):
    g = G()
    genfn(g, name)
    probs = g.check_branches()
    for p in probs: print('BRANCH HAZARD', p, file=sys.stderr)
    n = sum(1 for x in g.out if isinstance(x, Ins))
    print(f'{name}: {n} instrs, nop states added {g.nops_added}', file=sys.stderr)
    return f""".text
.globl {name}
.p2align 8
.type {name},@function
{name}:
{g.text()}
""" + kd(name, nv, acc)

def main(out, which):
    launches = []
    body = []
    if 'k1' in which:
        launches.append('; @launch kernel=attn_kernel grid=(256,1,1) block=(512,1,1) lds=163840')
        body.append(kernel('attn_kernel', k1.gen_k1, 256, 160))
    if 'k2' in which:
        import k2
        launches.append('; @launch kernel=oproj_kernel grid=(256,1,1) block=(512,1,1) lds=163840')
        body.append(kernel('oproj_kernel', k2.gen_k2, 256, 128))
    if 'k3' in which:
        import k2
        launches.append('; @launch kernel=reduce_kernel grid=(256,1,1) block=(256,1,1) lds=0')
        body.append(kernel('reduce_kernel', k2.gen_k3, 64, 64))
    txt = HEADER + '\n'.join(launches) + '\n.amdgcn_target "amdgcn-amd-amdhsa--gfx950"\n' + '\n'.join(body)
    open(out, 'w').write(txt)

if __name__ == '__main__':
    if len(sys.argv) > 3:
        o = sys.argv[3].split(',')
        if 'prof' in o: k1.PROF = True
        k1.OPT = set(o)
    main(sys.argv[1], sys.argv[2].split(','))
```
